```python
import torch

def _softmax(x, axis=-1):
    return torch.softmax(x, dim=axis)
def _gelu(x):
    return torch.nn.functional.gelu(x, approximate="tanh")
def _silu(x):
    return torch.nn.functional.silu(x)
def _sigmoid(x):
    return torch.sigmoid(x)
def _layernorm(x, axis=-1, eps=1e-5):
    m = x.mean(dim=axis, keepdim=True)
    v = x.var(dim=axis, keepdim=True, unbiased=False)
    return (x - m) / torch.sqrt(v + eps)
def _scatter_add(tgt, idx, src, axis=0):
    return tgt.clone().index_add_(axis, idx, src)
def _segment_sum(src, seg, n):
    out = torch.zeros((n,) + src.shape[1:], dtype=src.dtype)
    return out.index_add_(0, seg, src)
def _pad(x, pw):
    flat = tuple(v for pair in reversed(pw) for v in pair)
    return torch.nn.functional.pad(x, flat)

kernel_name = 'interleave_layers__linear_kernel_hedgehog__glu_gated_glu__prompt'

def setup_inputs():

    _w = (lambda a: (lambda t: t.to(torch.bfloat16) if t.is_floating_point() else t)(torch.as_tensor(a)))
    def _A_setup():
        B, S, D, H = 1, 2048, 448, 16
        Dh = D // H
        return {
            "x": _w((lambda *s: torch.randn(*s, dtype=torch.bfloat16) * 0.05)(B, S, D)),
            "wqkv": _w((lambda *s: torch.randn(*s, dtype=torch.bfloat16) * 0.4)(D, 3 * D)),
            "w_phi": _w((lambda *s: torch.randn(*s, dtype=torch.bfloat16) * 0.4)(H, Dh, Dh) * (Dh ** -0.5)),
            "wo": _w((lambda *s: torch.randn(*s, dtype=torch.bfloat16) * 0.05)(D, D)),
        }
    _A_in = _A_setup()

    def _B_setup():
        B, S, D, F = 1, 2048, 448, 1792
        return {
            "x": _w((lambda *s: torch.randn(*s, dtype=torch.bfloat16) * 0.05)(B, S, D)),
            "w_gate": _w((lambda *s: torch.randn(*s, dtype=torch.bfloat16) * 0.05)(D, F)),
            "w_up": _w((lambda *s: torch.randn(*s, dtype=torch.bfloat16) * 0.05)(D, F)),
            "w_down": _w((lambda *s: torch.randn(*s, dtype=torch.bfloat16) * 0.05)(F, D)),
        }
    _B_in = _B_setup()

    return {
        "A_x": _A_in["x"],
        "A_wqkv": _A_in["wqkv"],
        "A_w_phi": _A_in["w_phi"],
        "A_wo": _A_in["wo"],
        "B_x": _B_in["x"],
        "B_w_gate": _B_in["w_gate"],
        "B_w_up": _B_in["w_up"],
        "B_w_down": _B_in["w_down"],
    }

def reference(A_x, A_wqkv, A_w_phi, A_wo, B_x, B_w_gate, B_w_up, B_w_down):
    def _A_ref(x, wqkv, w_phi, wo):
        B, S, D = x.shape
        H = 16; Dh = D // H
        qkv = (lambda x, *d: x.permute(*d))((x @ wqkv).reshape(B, S, 3, H, Dh), 2, 0, 3, 1, 4)
        q, k, v = qkv[0], qkv[1], qkv[2]
        pq = torch.einsum("bhsd,hdf->bhsf", q, w_phi)
        pk = torch.einsum("bhsd,hdf->bhsf", k, w_phi)
        phi_q = torch.concatenate([_softmax(pq, axis=-1), _softmax(-pq, axis=-1)], axis=-1)
        phi_k = torch.concatenate([_softmax(pk, axis=-1), _softmax(-pk, axis=-1)], axis=-1)
        kv = torch.einsum("bhsf,bhsd->bhfd", phi_k, v)
        z  = torch.einsum("bhsf->bhf", phi_k)
        num = torch.einsum("bhqf,bhfd->bhqd", phi_q, kv)
        den = torch.einsum("bhqf,bhf->bhq", phi_q, z)[..., None] + 1e-6
        o = num / den
        return (lambda x, *d: x.permute(*d))(o, 0, 2, 1, 3).reshape(B, S, D) @ wo

    def _B_ref(x, w_gate, w_up, w_down):
        g = torch.einsum("bsd,df->bsf", x, w_gate)
        u = torch.einsum("bsd,df->bsf", x, w_up)
        h = _sigmoid(g) * u
        return torch.einsum("bsf,fd->bsd", h, w_down)

    x = A_x
    x = x + _A_ref(_layernorm(x, axis=-1), A_wqkv, A_w_phi, A_wo)
    x = x + _B_ref(_layernorm(x, axis=-1), B_w_gate, B_w_up, B_w_down)
    x = x + _A_ref(_layernorm(x, axis=-1), A_wqkv, A_w_phi, A_wo)
    x = x + _B_ref(_layernorm(x, axis=-1), B_w_gate, B_w_up, B_w_down)
    return x
```

```python
import sys

NAME = "interleave_layers__linear_kernel_hedgehog__glu_gated_glu__prompt"

KB = 1024
WQKV_P = 0
WPHI_P = WQKV_P + 1344 * KB
WO_P   = WPHI_P + 32 * KB
WGU_P  = WO_P + 448 * KB
WD_P   = WGU_P + 3136 * KB
KVSUM  = WD_P + 1568 * KB
PHIQ   = KVSUM + 256 * KB
XBUF   = PHIQ + 4096 * KB
XSZ    = 2048 * 448 * 2
HBUF   = XBUF + 3 * XSZ
WS_END = HBUF + 64 * 56 * 2 * KB
WS_SIZE = 0x10000000

out = []
def A(s=""):
    out.append("    " + s if s and not s.endswith(":") else s)
def L(s):
    out.append(s + ":")
def nop(n):
    while n > 0:
        k = min(n, 16)
        A(f"s_nop {k-1}")
        n -= k

def srd(d, base, nbytes):
    A(f"s_mov_b32 s{d}, s{base}")
    A(f"s_and_b32 s{d+1}, s{base+1}, 0xffff")
    A(f"s_mov_b32 s{d+2}, {nbytes}")
    A(f"s_mov_b32 s{d+3}, 0x00020000")

def load_kernargs():
    A("s_load_dwordx16 s[4:19], s[0:1], 0")
    A("s_load_dwordx4 s[20:23], s[0:1], 64")
    A("s_load_dwordx2 s[24:25], s[0:1], 80")
    A("s_waitcnt lgkmcnt(0)")

kernels = []
launches = []

def kernel_begin(label):
    out.append(f".globl {label}")
    out.append(".p2align 8")
    out.append(f".type {label},@function")
    out.append(f"{label}:")

def gen_k0():
    NF = 1344 + 32 + 448 + 3136 + 1568
    NZ = 64
    NW = NF + NZ
    NWG = (NW + 3) // 4
    kernel_begin("k0_kernel")
    A(f"s_cmp_ge_u32 s2, {NWG}")
    A("s_cbranch_scc1 K0_END")
    load_kernargs()
    srd(28, 24, WS_SIZE)
    A("v_lshrrev_b32 v1, 6, v0")
    A("v_and_b32 v2, 63, v0")
    A("s_nop 0")
    A("v_readfirstlane_b32 s3, v1")
    A("s_lshl_b32 s26, s2, 2")
    A("s_add_u32 s26, s26, s3")
    A("v_and_b32 v3, 31, v2")
    A("v_lshrrev_b32 v4, 5, v2")
    A("v_bfe_u32 v5, v3, 2, 1")
    A("v_lshlrev_b32 v5, 4, v5")
    A("v_lshrrev_b32 v6, 3, v3")
    A("v_lshl_add_u32 v5, v6, 2, v5")
    A("v_and_b32 v6, 3, v3")
    A("v_add_u32 v5, v5, v6")
    A("v_lshlrev_b32 v30, 4, v2")
    A("v_mov_b32 v31, 0x7ffffff0")
    A(f"s_cmp_ge_u32 s26, {NF}")
    A("s_cbranch_scc1 K0_ZERO")
    A(f"s_cmp_ge_u32 s26, {1344+32+448+3136}")
    A("s_cbranch_scc1 K0_WD")
    A(f"s_cmp_ge_u32 s26, {1344+32+448}")
    A("s_cbranch_scc1 K0_WGU")
    A(f"s_cmp_ge_u32 s26, {1344+32}")
    A("s_cbranch_scc1 K0_WO")
    A(f"s_cmp_ge_u32 s26, {1344}")
    A("s_cbranch_scc1 K0_WPHI")
    srd(32, 6, 448 * 1344 * 2)
    A("s_mov_b32 s36, 0x924924a")
    A("s_mul_hi_u32 s37, s26, s36")
    A("s_mul_i32 s38, s37, 28")
    A("s_sub_u32 s38, s26, s38")
    A("s_mov_b32 s36, 0x55555556")
    A("s_mul_hi_u32 s39, s37, s36")
    A("s_mul_i32 s40, s39, 3")
    A("s_sub_u32 s40, s37, s40")
    A("s_mul_i32 s41, s38, 16*2688")
    A("s_mul_i32 s42, s40, 896")
    A("s_add_u32 s41, s41, s42")
    A("s_mul_i32 s42, s39, 56")
    A("s_add_u32 s41, s41, s42")
    A("v_mul_u32_u24 v6, 8*2688, v4")
    A("v_lshl_add_u32 v6, v3, 1, v6")
    A("v_add_u32 v6, s41, v6")
    A("v_cmp_gt_u32 vcc, 28, v3")
    nop(2)
    A("v_cndmask_b32 v6, v31, v6, vcc")
    for j in range(8):
        A(f"v_add_u32 v{8+j}, {j*2688}, v6")
    A(f"s_add_u32 s43, s26, {WQKV_P//KB}")
    A("s_branch K0_LOAD")
    L("K0_WPHI")
    srd(32, 8, 16 * 28 * 28 * 2)
    A(f"s_sub_u32 s36, s26, {1344}")
    A("s_lshr_b32 s37, s36, 1")
    A("s_and_b32 s38, s36, 1")
    A("s_mul_i32 s41, s37, 1568")
    A("s_mul_i32 s42, s38, 16*56")
    A("s_add_u32 s41, s41, s42")
    A("v_mul_u32_u24 v6, 4*56, v4")
    A("v_lshl_add_u32 v6, v3, 1, v6")
    A("v_add_u32 v6, s41, v6")
    A("v_cmp_gt_u32 vcc, 28, v3")
    nop(2)
    A("v_cndmask_b32 v6, v31, v6, vcc")
    A("s_lshl_b32 s42, s38, 0")
    A("v_and_b32 v7, s42, v4")
    A("v_cmp_eq_u32 vcc, 0, v7")
    nop(2)
    A("v_cndmask_b32 v7, v31, v6, vcc")
    for j in range(8):
        dj = (j & 3) + 8 * (j >> 2)
        A(f"v_add_u32 v{8+j}, {dj*56}, v{6 if j < 4 else 7}")
    A(f"s_add_u32 s43, s36, {WPHI_P//KB}")
    A("s_branch K0_LOAD")
    L("K0_WO")
    srd(32, 10, 448 * 448 * 2)
    A(f"s_sub_u32 s36, s26, {1344+32}")
    A("s_and_b32 s38, s36, 1")
    A("s_lshr_b32 s37, s36, 1")
    A("s_and_b32 s39, s37, 15")
    A("s_lshr_b32 s40, s37, 4")
    A("s_mul_i32 s41, s39, 28*896")
    A("s_mul_i32 s42, s38, 16*896")
    A("s_add_u32 s41, s41, s42")
    A("s_lshl_b32 s42, s40, 6")
    A("s_add_u32 s41, s41, s42")
    A("v_mul_u32_u24 v6, 4*896, v4")
    A("v_lshl_add_u32 v6, v5, 1, v6")
    A("v_add_u32 v6, s41, v6")
    A("v_and_b32 v7, s38, v4")
    A("v_cmp_eq_u32 vcc, 0, v7")
    nop(2)
    A("v_cndmask_b32 v7, v31, v6, vcc")
    for j in range(8):
        dj = (j & 3) + 8 * (j >> 2)
        A(f"v_add_u32 v{8+j}, {dj*896}, v{6 if j < 4 else 7}")
    A(f"s_add_u32 s43, s36, {WO_P//KB}")
    A("s_branch K0_LOAD")
    L("K0_WGU")
    A(f"s_sub_u32 s36, s26, {1344+32+448}")
    A("s_and_b32 s38, s36, 1")
    A("s_lshr_b32 s37, s36, 1")
    A("s_mov_b32 s39, 0x924924a")
    A("s_mul_hi_u32 s39, s37, s39")
    A("s_mul_i32 s40, s39, 28")
    A("s_sub_u32 s40, s37, s40")
    A("s_cmp_eq_u32 s38, 0")
    A("s_cselect_b32 s44, s14, s16")
    A("s_cselect_b32 s45, s15, s17")
    srd(32, 44, 448 * 1792 * 2)
    A("s_mul_i32 s41, s40, 16*3584")
    A("s_lshl_b32 s42, s39, 6")
    A("s_add_u32 s41, s41, s42")
    A("v_mul_u32_u24 v6, 8*3584, v4")
    A("v_lshl_add_u32 v6, v3, 1, v6")
    A("v_add_u32 v6, s41, v6")
    for j in range(8):
        A(f"v_add_u32 v{8+j}, {j*3584}, v6")
    A(f"s_add_u32 s43, s36, {WGU_P//KB}")
    A("s_branch K0_LOAD")
    L("K0_WD")
    srd(32, 18, 1792 * 448 * 2)
    A(f"s_sub_u32 s36, s26, {1344+32+448+3136}")
    A("s_and_b32 s38, s36, 1")
    A("s_lshr_b32 s37, s36, 1")
    A("s_mov_b32 s39, 0x4924925")
    A("s_mul_hi_u32 s39, s37, s39")
    A("s_mul_i32 s40, s39, 56")
    A("s_sub_u32 s40, s37, s40")
    A("s_mul_i32 s41, s40, 32*896")
    A("s_mul_i32 s42, s38, 16*896")
    A("s_add_u32 s41, s41, s42")
    A("s_lshl_b32 s42, s39, 6")
    A("s_add_u32 s41, s41, s42")
    A("v_mul_u32_u24 v6, 4*896, v4")
    A("v_lshl_add_u32 v6, v5, 1, v6")
    A("v_add_u32 v6, s41, v6")
    for j in range(8):
        dj = (j & 3) + 8 * (j >> 2)
        A(f"v_add_u32 v{8+j}, {dj*896}, v6")
    A(f"s_add_u32 s43, s36, {WD_P//KB}")
    L("K0_LOAD")
    for j in range(8):
        A(f"buffer_load_ushort v{16+j}, v{8+j}, s[32:35], 0 offen")
    A("s_lshl_b32 s43, s43, 10")
    A("s_waitcnt vmcnt(0)")
    for i in range(4):
        A(f"v_lshl_or_b32 v{24+i}, v{16+2*i+1}, 16, v{16+2*i}")
    A("buffer_store_dwordx4 v[24:27], v30, s[28:31], s43 offen")
    A("s_endpgm")
    L("K0_ZERO")
    A(f"s_cmp_ge_u32 s26, {NW}")
    A("s_cbranch_scc1 K0_END")
    A(f"s_sub_u32 s36, s26, {NF}")
    A("s_lshl_b32 s36, s36, 12")
    A(f"s_add_u32 s36, s36, {KVSUM}")
    for i in range(4):
        A(f"v_mov_b32 v{24+i}, 0")
    for i in range(4):
        A(f"buffer_store_dwordx4 v[24:27], v30, s[28:31], s36 offen offset:{i*1024}")
    L("K0_END")
    A("s_endpgm")
    kernels.append(("k0_kernel", 32, 48))
    return NWG

def gen_ln(xs, s_rb, s_w, vbase):
    P = vbase
    F = vbase + 56
    T = vbase + 112
    A("v_lshrrev_b32 v3, 3, v2")
    A("v_and_b32 v4, 7, v2")
    A(f"s_lshl_b32 s90, s{s_rb}, 7")
    A(f"s_lshl_b32 s91, s{s_w}, 4")
    A("s_add_u32 s90, s90, s91")
    A("s_mul_i32 s90, s90, 896")
    A("v_mul_u32_u24 v5, 896, v3")
    A("v_lshl_add_u32 v5, v4, 4, v5")
    A("v_add_u32 v6, 8*896, v5")
    for ps in range(2):
        for i in range(7):
            r = P + ps * 28 + i * 4
            A(f"buffer_load_dwordx4 v[{r}:{r+3}], v{5+ps}, s[{xs}:{xs+3}], s90 offen offset:{i*128}")
    A(f"s_lshr_b32 s91, s{s_w}, 1")
    A("s_mul_i32 s91, s91, 56*512")
    A(f"s_and_b32 s92, s{s_w}, 1")
    A("s_lshl_b32 s92, s92, 4")
    for ps in range(2):
        A(f"v_add_u32 v7, s92, v3")
        A(f"v_add_u32 v7, {8*ps}, v7")
        A("v_add_u32 v7, v7, v4")
        A("v_and_b32 v7, 31, v7")
        A("v_lshlrev_b32 v7, 4, v7")
        A("v_lshl_add_u32 v7, v4, 9, v7")
        A(f"v_add_u32 v{8+ps}, s91, v7")
    for ps in range(2):
        A(f"s_waitcnt vmcnt({7 if ps == 0 else 0})")
        for i in range(28):
            r = P + ps * 28 + i
            A(f"v_lshlrev_b32 v{F+2*i}, 16, v{r}")
            A(f"v_and_b32 v{F+2*i+1}, 0xffff0000, v{r}")
        for a in range(4):
            A(f"v_pk_add_f32 v[{T+2*a}:{T+2*a+1}], v[{F+2*a}:{F+2*a+1}], v[{F+8+2*a}:{F+8+2*a+1}]")
        for i in range(8, 28):
            a = i & 3
            A(f"v_pk_add_f32 v[{T+2*a}:{T+2*a+1}], v[{T+2*a}:{T+2*a+1}], v[{F+2*i}:{F+2*i+1}]")
        A(f"v_pk_add_f32 v[{T}:{T+1}], v[{T}:{T+1}], v[{T+2}:{T+3}]")
        A(f"v_pk_add_f32 v[{T+4}:{T+5}], v[{T+4}:{T+5}], v[{T+6}:{T+7}]")
        A(f"v_pk_add_f32 v[{T}:{T+1}], v[{T}:{T+1}], v[{T+4}:{T+5}]")
        A(f"v_add_f32 v{T}, v{T}, v{T+1}")
        def red8(r):
            nop(2)
            A(f"v_add_f32_dpp v{r}, v{r}, v{r} quad_perm:[1,0,3,2] row_mask:0xf bank_mask:0xf")
            nop(2)
            A(f"v_add_f32_dpp v{r}, v{r}, v{r} quad_perm:[2,3,0,1] row_mask:0xf bank_mask:0xf")
            nop(2)
            A(f"v_add_f32_dpp v{r}, v{r}, v{r} row_half_mirror row_mask:0xf bank_mask:0xf")
        red8(T)
        A(f"v_mul_f32 v{T+8}, 0xbb124925, v{T}")
        A(f"v_mov_b32 v{T+9}, v{T+8}")
        for a in range(4):
            A(f"v_mov_b32 v{T+2*a}, 0")
            A(f"v_mov_b32 v{T+2*a+1}, 0")
        for i in range(28):
            a = i & 3
            d = T + 10 + 2 * (i & 1)
            A(f"v_pk_add_f32 v[{d}:{d+1}], v[{F+2*i}:{F+2*i+1}], v[{T+8}:{T+9}]")
            A(f"v_pk_fma_f32 v[{T+2*a}:{T+2*a+1}], v[{d}:{d+1}], v[{d}:{d+1}], v[{T+2*a}:{T+2*a+1}]")
        A(f"v_pk_add_f32 v[{T}:{T+1}], v[{T}:{T+1}], v[{T+2}:{T+3}]")
        A(f"v_pk_add_f32 v[{T+4}:{T+5}], v[{T+4}:{T+5}], v[{T+6}:{T+7}]")
        A(f"v_pk_add_f32 v[{T}:{T+1}], v[{T}:{T+1}], v[{T+4}:{T+5}]")
        A(f"v_add_f32 v{T}, v{T}, v{T+1}")
        red8(T)
        A(f"v_mul_f32 v{T}, 0x3b124925, v{T}")
        A(f"v_cvt_pk_bf16_f32 v{T+1}, v{T}, v{T+8}")
        A(f"v_lshlrev_b32 v{T+2}, 16, v{T+1}")
        A(f"v_and_b32 v{T+8}, 0xffff0000, v{T+1}")
        A(f"v_mov_b32 v{T+9}, v{T+8}")
        A(f"v_add_f32 v{T+2}, 0x3727c5ac, v{T+2}")
        A(f"v_cvt_pk_bf16_f32 v{T+2}, v{T+2}, v{T+2}")
        A(f"v_lshlrev_b32 v{T+2}, 16, v{T+2}")
        A(f"v_sqrt_f32 v{T+2}, v{T+2}")
        nop(1)
        A(f"v_cvt_pk_bf16_f32 v{T+2}, v{T+2}, v{T+2}")
        A(f"v_lshlrev_b32 v{T+2}, 16, v{T+2}")
        A(f"v_rcp_f32 v{T+4}, v{T+2}")
        nop(1)
        A(f"v_mov_b32 v{T+5}, v{T+4}")
        for i in range(28):
            A(f"v_pk_add_f32 v[{F+2*i}:{F+2*i+1}], v[{F+2*i}:{F+2*i+1}], v[{T+8}:{T+9}]")
        if LN_EXACT:
            for i in range(28):
                r = P + ps * 28 + i
                A(f"v_cvt_pk_bf16_f32 v{r}, v{F+2*i}, v{F+2*i+1}")
            for i in range(28):
                r = P + ps * 28 + i
                A(f"v_lshlrev_b32 v{F+2*i}, 16, v{r}")
                A(f"v_and_b32 v{F+2*i+1}, 0xffff0000, v{r}")
        for i in range(28):
            A(f"v_pk_mul_f32 v[{F+2*i}:{F+2*i+1}], v[{F+2*i}:{F+2*i+1}], v[{T+4}:{T+5}]")
        for i in range(28):
            r = P + ps * 28 + i
            A(f"v_cvt_pk_bf16_f32 v{r}, v{F+2*i}, v{F+2*i+1}")
        for i in range(7):
            r = P + ps * 28 + i * 4
            A(f"ds_write_b128 v{8+ps}, v[{r}:{r+3}] offset:{i*4096}")

LN_EXACT = True

def gen_xaddr(vb, s_ttoff):
    A("v_and_b32 v10, 31, v2")
    A("v_lshrrev_b32 v11, 5, v2")
    for b in range(4):
        A(f"v_add_u32 v12, {2*b}, v11")
        A("v_add_u32 v13, v12, v10")
        A("v_and_b32 v13, 31, v13")
        A("v_lshlrev_b32 v13, 4, v13")
        A("v_lshl_add_u32 v13, v12, 9, v13")
        A(f"v_add_u32 v{vb+b}, s{s_ttoff}, v13")

def gen_softmax(P, R, E, T, O, mh):
    for i in range(8):
        A(f"v_cvt_pk_bf16_f32 v{O+i}, v{P+2*i}, v{P+2*i+1}")
    for i in range(8):
        A(f"v_lshlrev_b32 v{R+2*i}, 16, v{O+i}")
        A(f"v_and_b32 v{R+2*i+1}, 0xffff0000, v{O+i}")
    for r in range(12, 16):
        A(f"v_cndmask_b32 v{R+r}, v{R+r}, v{R}, s[{mh}:{mh+1}]")
    A(f"v_max3_f32 v{T}, v{R}, v{R+1}, v{R+2}")
    A(f"v_min3_f32 v{T+1}, v{R}, v{R+1}, v{R+2}")
    for i in range(3, 15, 2):
        A(f"v_max3_f32 v{T}, v{T}, v{R+i}, v{R+i+1}")
        A(f"v_min3_f32 v{T+1}, v{T+1}, v{R+i}, v{R+i+1}")
    A(f"v_max_f32 v{T}, v{T}, v{R+15}")
    A(f"v_min_f32 v{T+1}, v{T+1}, v{R+15}")
    A(f"v_mov_b32 v{T+2}, v{T}")
    A(f"v_mov_b32 v{T+3}, v{T+1}")
    nop(2)
    A(f"v_permlane32_swap_b32 v{T}, v{T+2}")
    A(f"v_permlane32_swap_b32 v{T+1}, v{T+3}")
    nop(2)
    A(f"v_max_f32 v{T}, v{T}, v{T+2}")
    A(f"v_min_f32 v{T+1}, v{T+1}, v{T+3}")
    for r in range(16):
        A(f"v_sub_f32 v{E+r}, v{R+r}, v{T}")
        A(f"v_sub_f32 v{E+16+r}, v{T+1}, v{R+r}")
    for r in range(32):
        A(f"v_mul_f32 v{E+r}, 0x3fb8aa3b, v{E+r}")
    for r in range(32):
        A(f"v_exp_f32 v{E+r}, v{E+r}")
    nop(1)
    for r in range(12, 16):
        A(f"v_cndmask_b32 v{E+r}, v{E+r}, 0, s[{mh}:{mh+1}]")
        A(f"v_cndmask_b32 v{E+16+r}, v{E+16+r}, 0, s[{mh}:{mh+1}]")
    A(f"v_add_f32 v{T}, v{E}, v{E+1}")
    A(f"v_add_f32 v{T+1}, v{E+16}, v{E+17}")
    for r in range(2, 16):
        A(f"v_add_f32 v{T}, v{T}, v{E+r}")
        A(f"v_add_f32 v{T+1}, v{T+1}, v{E+16+r}")
    A(f"v_mov_b32 v{T+2}, v{T}")
    A(f"v_mov_b32 v{T+3}, v{T+1}")
    nop(2)
    A(f"v_permlane32_swap_b32 v{T}, v{T+2}")
    A(f"v_permlane32_swap_b32 v{T+1}, v{T+3}")
    nop(2)
    A(f"v_add_f32 v{T}, v{T}, v{T+2}")
    A(f"v_add_f32 v{T+1}, v{T+1}, v{T+3}")
    A(f"v_rcp_f32 v{T}, v{T}")
    A(f"v_rcp_f32 v{T+1}, v{T+1}")
    nop(1)
    for r in range(16):
        A(f"v_mul_f32 v{E+r}, v{E+r}, v{T}")
        A(f"v_mul_f32 v{E+16+r}, v{E+16+r}, v{T+1}")
    for i in range(16):
        A(f"v_cvt_pk_bf16_f32 v{O+i}, v{E+2*i}, v{E+2*i+1}")

def gen_k1():
    for layer in range(2):
        kernel_begin(f"k1{'ab'[layer]}_kernel")
        A(f"s_mov_b32 s48, {layer}")
        A("s_branch K1_BODY")
        kernels.append((f"k1{'ab'[layer]}_kernel", 256, 102))
    out.append(".p2align 8")
    L("K1_BODY")
    A("s_cmp_ge_u32 s2, 256")
    A("s_cbranch_scc1 K1_END")
    load_kernargs()
    srd(28, 24, WS_SIZE)
    A(f"s_add_u32 s44, s24, {XBUF + XSZ}")
    A("s_addc_u32 s45, s25, 0")
    A("s_cmp_eq_u32 s48, 0")
    A("s_cselect_b32 s44, s4, s44")
    A("s_cselect_b32 s45, s5, s45")
    srd(32, 44, XSZ)
    A("s_and_b32 s50, s2, 15")
    A("s_lshr_b32 s51, s2, 4")
    A("v_lshrrev_b32 v1, 6, v0")
    A("v_and_b32 v2, 63, v0")
    A("s_nop 0")
    A("v_readfirstlane_b32 s52, v1")
    A("v_lshlrev_b32 v1, 4, v2")
    A("s_and_b32 s53, s52, 3")
    A("s_lshr_b32 s54, s52, 2")
    A("s_mul_i32 s55, s50, 84*1024")
    A(f"s_add_u32 s55, s55, {WQKV_P}")
    A(f"s_mul_i32 s56, s54, {28*1024}")
    A("s_add_u32 s55, s55, s56")
    A(f"s_add_u32 s56, s55, {28*1024}")
    A("s_mov_b32 s60, 0")
    A("s_mov_b32 s61, -1")
    NB = 12
    WB = 16
    A("s_cmp_eq_u32 s54, 0")
    A("s_cbranch_scc0 K1_PF_KV")
    for i in range(NB):
        A(f"s_add_u32 s57, s55, {(i//4)*4096}")
        A(f"buffer_load_dwordx4 v[{WB+4*i}:{WB+4*i+3}], v1, s[28:31], s57 offen offset:{(i%4)*1024}")
    A("s_branch K1_PF_DONE")
    L("K1_PF_KV")
    for i in range(NB):
        s = i // 2
        base = 55 + (i & 1)
        A(f"s_add_u32 s57, s{base}, {(s//4)*4096}")
        A(f"buffer_load_dwordx4 v[{WB+4*i}:{WB+4*i+3}], v1, s[28:31], s57 offen offset:{(s%4)*1024}")
    L("K1_PF_DONE")
    gen_ln(32, 51, 52, 64)
    A(f"s_mul_i32 s58, s53, {56*512}")
    gen_xaddr(4, 58)
    for r in range(32):
        A(f"v_mov_b32 v{64+r}, 0")
    A("s_waitcnt lgkmcnt(0)")
    A("s_barrier")
    XB = 96
    A("s_cmp_eq_u32 s54, 0")
    A("s_cbranch_scc0 K1_KV")
    def xread(s):
        a, b = s // 4, s % 4
        r = XB + 4 * (s % 4)
        A(f"ds_read_b128 v[{r}:{r+3}], v{4+b} offset:{a*4096}")
    for s in range(3):
        xread(s)
    for s in range(28):
        if s + 3 < 28:
            xread(s + 3)
        nl = min(28, s + 3 + 1) - (s + 1)
        nv = min(28, s + NB) - (s + 1)
        A(f"s_waitcnt vmcnt({nv}) lgkmcnt({nl})")
        w = WB + 4 * (s % NB)
        x = XB + 4 * (s % 4)
        A(f"v_mfma_f32_32x32x16_bf16 v[64:79], v[{w}:{w+3}], v[{x}:{x+3}], v[64:79]")
        if s + NB < 28:
            s2 = s + NB
            A(f"s_add_u32 s57, s55, {(s2//4)*4096}")
            A(f"buffer_load_dwordx4 v[{w}:{w+3}], v1, s[28:31], s57 offen offset:{(s2%4)*1024}")
    A("s_branch K1_FEAT")
    L("K1_KV")
    for s in range(3):
        xread(s)
    NS = NB // 2
    for s in range(28):
        if s + 3 < 28:
            xread(s + 3)
        nl = min(28, s + 3 + 1) - (s + 1)
        nv = 2 * (min(28, s + NS) - (s + 1))
        A(f"s_waitcnt vmcnt({nv}) lgkmcnt({nl})")
        w = WB + 8 * (s % NS)
        x = XB + 4 * (s % 4)
        A(f"v_mfma_f32_32x32x16_bf16 v[64:79], v[{w}:{w+3}], v[{x}:{x+3}], v[64:79]")
        A(f"v_mfma_f32_32x32x16_bf16 v[80:95], v[{x}:{x+3}], v[{w+4}:{w+7}], v[80:95]")
        if s + NS < 28:
            s2 = s + NS
            A(f"s_add_u32 s57, s55, {(s2//4)*4096}")
            A(f"buffer_load_dwordx4 v[{w}:{w+3}], v1, s[28:31], s57 offen offset:{(s2%4)*1024}")
            A(f"s_add_u32 s57, s56, {(s2//4)*4096}")
            A(f"buffer_load_dwordx4 v[{w+4}:{w+7}], v1, s[28:31], s57 offen offset:{(s2%4)*1024}")
    L("K1_FEAT")
    A("s_lshl_b32 s57, s50, 11")
    A(f"s_add_u32 s57, s57, {WPHI_P}")
    A("buffer_load_dwordx4 v[16:19], v1, s[28:31], s57 offen")
    A("buffer_load_dwordx4 v[20:23], v1, s[28:31], s57 offen offset:1024")
    nop(12)
    for i in range(8):
        A(f"v_cvt_pk_bf16_f32 v{24+i}, v{64+2*i}, v{64+2*i+1}")
    for r in range(16):
        A(f"v_mov_b32 v{112+r}, 0")
    A("s_waitcnt vmcnt(0)")
    nop(2)
    A("v_mfma_f32_32x32x16_bf16 v[112:127], v[16:19], v[24:27], v[112:127]")
    A("v_mfma_f32_32x32x16_bf16 v[112:127], v[20:23], v[28:31], v[112:127]")
    nop(14)
    gen_softmax(112, 128, 144, 176, 32, 60)
    A("s_cmp_eq_u32 s54, 0")
    A("s_cbranch_scc0 K1_KV2")
    A("s_lshl_b32 s57, s51, 2")
    A("s_add_u32 s57, s57, s53")
    A("s_lshl_b32 s57, s57, 4")
    A("s_add_u32 s57, s57, s50")
    A("s_lshl_b32 s57, s57, 12")
    A(f"s_add_u32 s57, s57, {PHIQ}")
    for i in range(4):
        A(f"buffer_store_dwordx4 v[{32+4*i}:{32+4*i+3}], v1, s[28:31], s57 offen offset:{i*1024}")
    A("s_barrier")
    A("s_endpgm")
    L("K1_KV2")
    SCR = 114688
    RED = SCR
    A("v_and_b32 v10, 31, v2")
    A("v_lshrrev_b32 v11, 5, v2")
    A("v_mul_u32_u24 v12, 136, v10")
    A("v_lshl_add_u32 v12, v11, 3, v12")
    A(f"s_lshl_b32 s57, s53, 13")
    A(f"s_add_u32 s57, s57, {SCR}")
    A("v_add_u32 v12, s57, v12")
    for t in range(2):
        for g in range(4):
            r = 32 + 8 * t + 2 * g
            A(f"ds_write_b64 v12, v[{r}:{r+1}] offset:{64*t + 16*g}")
    for i in range(8):
        A(f"v_cvt_pk_bf16_f32 v{48+i}, v{80+2*i}, v{80+2*i+1}")
    A("v_cmp_eq_u32 vcc, 28, v10")
    A("v_mov_b32 v13, 0x3f803f80")
    nop(2)
    for i in range(8):
        A(f"v_cndmask_b32 v{48+i}, v{48+i}, v13, vcc")
    A("v_and_b32 v13, 15, v2")
    A("v_lshrrev_b32 v14, 2, v13")
    A("v_lshl_add_u32 v14, v11, 2, v14")
    A("v_mul_u32_u24 v14, 136, v14")
    A("v_and_b32 v13, 3, v13")
    A("v_lshl_add_u32 v14, v13, 3, v14")
    A("v_bfe_u32 v13, v2, 4, 1")
    A("v_lshl_add_u32 v14, v13, 5, v14")
    A("v_add_u32 v14, s57, v14")
    A("s_waitcnt lgkmcnt(0)")
    for t in range(2):
        for ks in range(2):
            r = 96 + 8 * t + 4 * ks
            A(f"ds_read_b64_tr_b16 v[{r}:{r+1}], v14 offset:{64*t + 136*16*ks}")
            A(f"ds_read_b64_tr_b16 v[{r+2}:{r+3}], v14 offset:{64*t + 136*(16*ks+8)}")
    for r in range(32):
        A(f"v_mov_b32 v{64+r}, 0")
    A("s_waitcnt lgkmcnt(0)")
    nop(2)
    for t in range(2):
        for ks in range(2):
            r = 96 + 8 * t + 4 * ks
            A(f"v_mfma_f32_32x32x16_bf16 v[{64+16*t}:{79+16*t}], v[{48+4*ks}:{51+4*ks}], v[{r}:{r+3}], v[{64+16*t}:{79+16*t}]")
    nop(14)
    A(f"s_lshl_b32 s57, s53, 13")
    A(f"s_add_u32 s57, s57, {RED}")
    A("v_add_u32 v12, s57, v1")
    for q in range(8):
        A(f"ds_write_b128 v12, v[{64+4*q}:{64+4*q+3}] offset:{q*1024}")
    A("s_waitcnt lgkmcnt(0)")
    A("s_barrier")
    A(f"s_lshl_b32 s57, s53, 11")
    A(f"s_add_u32 s57, s57, {RED}")
    A("v_add_u32 v12, s57, v1")
    for w in range(4):
        for q in range(2):
            r = 64 + 8 * w + 4 * q
            A(f"ds_read_b128 v[{r}:{r+3}], v12 offset:{w*8192 + q*1024}")
    A("s_waitcnt lgkmcnt(0)")
    for i in range(8):
        A(f"v_add_f32 v{64+i}, v{64+i}, v{72+i}")
        A(f"v_add_f32 v{80+i}, v{80+i}, v{88+i}")
    for i in range(8):
        A(f"v_add_f32 v{64+i}, v{64+i}, v{80+i}")
    A("s_lshl_b32 s57, s48, 17")
    A(f"s_add_u32 s57, s57, {KVSUM}")
    A("s_lshl_b32 s58, s50, 13")
    A("s_add_u32 s57, s57, s58")
    A("s_lshr_b32 s58, s53, 1")
    A("s_lshl_b32 s58, s58, 7")
    A("s_add_u32 s57, s57, s58")
    A("s_and_b32 s58, s53, 1")
    A("s_lshl_b32 s58, s58, 12")
    A("s_add_u32 s57, s57, s58")
    A("v_lshlrev_b32 v12, 2, v10")
    A("v_lshl_add_u32 v12, v11, 10, v12")
    for i in range(8):
        d = (i & 3) + 8 * (i >> 2)
        A(f"buffer_atomic_add_f32 v{64+i}, v12, s[28:31], s57 offen offset:{d*256}")
    L("K1_END")
    A("s_endpgm")

def gen_red_epilogue(ACC, s_rb, s_cg, s_w, xs, dsr):
    A(f"s_lshl_b32 s57, s{s_w}, 14")
    A("v_add_u32 v12, s57, v1")
    A(f"s_lshr_b32 s58, s{s_w}, 2")
    A(f"s_lshl_b32 s59, s{s_rb}, 1")
    A("s_add_u32 s58, s58, s59")
    A("s_mul_i32 s58, s58, 32*896")
    A(f"s_lshl_b32 s59, s{s_cg}, 7")
    A("s_add_u32 s58, s58, s59")
    A(f"s_bfe_u32 s59, s{s_w}, 0x10001")
    A("s_lshl_b32 s59, s59, 6")
    A("s_add_u32 s58, s58, s59")
    A(f"s_and_b32 s59, s{s_w}, 1")
    A("s_lshl_b32 s59, s59, 4")
    A("s_add_u32 s58, s58, s59")
    A("v_and_b32 v10, 31, v2")
    A("v_lshrrev_b32 v11, 5, v2")
    A("v_mul_u32_u24 v13, 896, v10")
    A("v_lshl_add_u32 v13, v11, 5, v13")
    A(f"buffer_load_dwordx4 v[4:7], v13, s[{xs}:{xs+3}], s58 offen")
    nop(12)
    for q in range(16):
        A(f"ds_write_b128 v12, v[{ACC+4*q}:{ACC+4*q+3}] offset:{q*1024}")
    A("s_waitcnt lgkmcnt(0)")
    A("s_barrier")
    A(f"s_lshl_b32 s57, s{s_w}, 11")
    A("v_add_u32 v12, s57, v1")
    for w in range(8):
        for q in range(2):
            r = ACC + 8 * w + 4 * q
            off = w * 16384 + q * 1024
            if off < 65536:
                A(f"ds_read_b128 v[{r}:{r+3}], v12 offset:{off}")
            else:
                if w == 4 and q == 0:
                    A("v_add_u32 v14, 0x10000, v12")
                A(f"ds_read_b128 v[{r}:{r+3}], v14 offset:{off-65536}")
    A("s_waitcnt lgkmcnt(0)")
    for st in (32, 16, 8):
        for i in range(st):
            A(f"v_add_f32 v{ACC+i}, v{ACC+i}, v{ACC+st+i}")
    for i in range(4):
        A(f"v_cvt_pk_bf16_f32 v{ACC+8+i}, v{ACC+2*i}, v{ACC+2*i+1}")
    A("s_waitcnt vmcnt(0)")
    for i in range(4):
        A(f"v_lshlrev_b32 v{ACC+2*i}, 16, v{ACC+8+i}")
        A(f"v_and_b32 v{ACC+2*i+1}, 0xffff0000, v{ACC+8+i}")
        A(f"v_lshlrev_b32 v{ACC+16+2*i}, 16, v{4+i}")
        A(f"v_and_b32 v{ACC+16+2*i+1}, 0xffff0000, v{4+i}")
    for i in range(8):
        A(f"v_add_f32 v{ACC+i}, v{ACC+i}, v{ACC+16+i}")
    for i in range(4):
        A(f"v_cvt_pk_bf16_f32 v{ACC+8+i}, v{ACC+2*i}, v{ACC+2*i+1}")
    A(f"buffer_store_dwordx4 v[{ACC+8}:{ACC+11}], v13, s[{dsr}:{dsr+3}], s58 offen")

def gen_k2():
    for layer in range(2):
        kernel_begin(f"k2{'ab'[layer]}_kernel")
        A(f"s_mov_b32 s48, {layer}")
        A("s_branch K2_BODY")
        kernels.append((f"k2{'ab'[layer]}_kernel", 256, 102))
    out.append(".p2align 8")
    L("K2_BODY")
    A("s_cmp_ge_u32 s2, 224")
    A("s_cbranch_scc1 K2_END")
    load_kernargs()
    srd(28, 24, WS_SIZE)
    A(f"s_add_u32 s44, s24, {XBUF + XSZ}")
    A("s_addc_u32 s45, s25, 0")
    A("s_cmp_eq_u32 s48, 0")
    A("s_cselect_b32 s44, s4, s44")
    A("s_cselect_b32 s45, s5, s45")
    srd(32, 44, XSZ)
    A(f"s_mul_i32 s46, s48, {2*XSZ}")
    A(f"s_add_u32 s46, s46, {XBUF}")
    A("s_add_u32 s44, s24, s46")
    A("s_addc_u32 s45, s25, 0")
    srd(36, 44, XSZ)
    A("s_mov_b32 s46, 0x24924925")
    A("s_mul_hi_u32 s51, s2, s46")
    A("s_mul_i32 s50, s51, 7")
    A("s_sub_u32 s50, s2, s50")
    A("v_lshrrev_b32 v1, 6, v0")
    A("v_and_b32 v2, 63, v0")
    A("s_nop 0")
    A("v_readfirstlane_b32 s52, v1")
    A("v_lshlrev_b32 v1, 4, v2")
    A("v_and_b32 v10, 31, v2")
    A("v_lshrrev_b32 v11, 5, v2")
    ACC = 64
    for r in range(64):
        A(f"v_mov_b32 v{ACC+r}, 0")
    A("v_lshlrev_b32 v12, 8, v10")
    A("v_lshl_add_u32 v12, v11, 4, v12")
    for hh in range(2):
        A(f"s_lshl_b32 s53, s52, 1")
        A(f"s_add_u32 s53, s53, {hh}")
        A("s_lshl_b32 s57, s48, 17")
        A(f"s_add_u32 s57, s57, {KVSUM}")
        A("s_lshl_b32 s58, s53, 13")
        A("s_add_u32 s57, s57, s58")
        KV = 128 + 64 * 0
        for t in range(2):
            for ks in range(2):
                for g in range(2):
                    r = KV + 16 * t + 8 * ks + 4 * g
                    A(f"buffer_load_dwordx4 v[{r}:{r+3}], v12, s[28:31], s57 offen offset:{(32*t+16*ks+8*g)*4}")
        for tt in range(2):
            A(f"s_lshl_b32 s58, s51, 1")
            A(f"s_add_u32 s58, s58, {tt}")
            A("s_lshl_b32 s58, s58, 4")
            A("s_add_u32 s58, s58, s53")
            A("s_lshl_b32 s58, s58, 12")
            A(f"s_add_u32 s58, s58, {PHIQ}")
            for i in range(4):
                r = 176 + 16 * tt + 4 * i
                A(f"buffer_load_dwordx4 v[{r}:{r+3}], v1, s[28:31], s58 offen offset:{i*1024}")
        for c in range(2):
            A(f"s_lshl_b32 s58, s50, 1")
            A(f"s_add_u32 s58, s58, {c}")
            A("s_lshl_b32 s58, s58, 4")
            A("s_add_u32 s58, s58, s53")
            A("s_lshl_b32 s58, s58, 11")
            A(f"s_add_u32 s58, s58, {WO_P}")
            for ks in range(2):
                r = 208 + 8 * c + 4 * ks
                A(f"buffer_load_dwordx4 v[{r}:{r+3}], v1, s[28:31], s58 offen offset:{ks*1024}")
        A("s_waitcnt vmcnt(12)")
        for i in range(16):
            A(f"v_cvt_pk_bf16_f32 v{160+i}, v{KV+2*i}, v{KV+2*i+1}")
        for tt in range(2):
            O = 16 + 16 * tt
            for r in range(16):
                A(f"v_mov_b32 v{O+r}, 0")
            A(f"s_waitcnt vmcnt({8 if tt == 0 else 4})")
            nop(2)
            for i in range(4):
                A(f"v_mfma_f32_32x32x16_bf16 v[{O}:{O+15}], v[{160+4*i}:{160+4*i+3}], v[{176+16*tt+4*i}:{176+16*tt+4*i+3}], v[{O}:{O+15}]")
        nop(14)
        for tt in range(2):
            O = 16 + 16 * tt
            A(f"v_mov_b32 v48, v{O+12}")
            A(f"v_mov_b32 v49, v{O+12}")
            nop(2)
            A("v_permlane32_swap_b32 v48, v49")
            nop(2)
            A("v_cvt_pk_bf16_f32 v49, v49, v49")
            A("v_lshlrev_b32 v49, 16, v49")
            A("v_add_f32 v49, 0x358637bd, v49")
            A("v_cvt_pk_bf16_f32 v49, v49, v49")
            A("v_lshlrev_b32 v49, 16, v49")
            A("v_rcp_f32 v49, v49")
            for i in range(8):
                A(f"v_cvt_pk_bf16_f32 v{50+i}, v{O+2*i}, v{O+2*i+1}")
            for i in range(8):
                A(f"v_lshlrev_b32 v{O+2*i}, 16, v{50+i}")
                A(f"v_and_b32 v{O+2*i+1}, 0xffff0000, v{50+i}")
            for r in range(16):
                A(f"v_mul_f32 v{O+r}, v{O+r}, v49")
            for i in range(8):
                A(f"v_cvt_pk_bf16_f32 v{O+i}, v{O+2*i}, v{O+2*i+1}")
        A("s_waitcnt vmcnt(0)")
        nop(2)
        for tt in range(2):
            O = 16 + 16 * tt
            for c in range(2):
                a = ACC + 16 * (2 * tt + c)
                for ks in range(2):
                    A(f"v_mfma_f32_32x32x16_bf16 v[{a}:{a+15}], v[{208+8*c+4*ks}:{208+8*c+4*ks+3}], v[{O+4*ks}:{O+4*ks+3}], v[{a}:{a+15}]")
        nop(8)
    gen_red_epilogue(ACC, 51, 50, 52, 32, 36)
    L("K2_END")
    A("s_endpgm")

def gen_k3():
    for layer in range(2):
        kernel_begin(f"k3{'ab'[layer]}_kernel")
        A(f"s_mov_b32 s48, {layer}")
        A("s_branch K3_BODY")
        kernels.append((f"k3{'ab'[layer]}_kernel", 256, 102))
    out.append(".p2align 8")
    L("K3_BODY")
    A("s_cmp_ge_u32 s2, 224")
    A("s_cbranch_scc1 K3_END")
    load_kernargs()
    srd(28, 24, WS_SIZE)
    A(f"s_mul_i32 s46, s48, {2*XSZ}")
    A(f"s_add_u32 s46, s46, {XBUF}")
    A("s_add_u32 s44, s24, s46")
    A("s_addc_u32 s45, s25, 0")
    srd(32, 44, XSZ)
    A("s_mov_b32 s46, 0x12492493")
    A("s_mul_hi_u32 s51, s2, s46")
    A("s_mul_i32 s50, s51, 14")
    A("s_sub_u32 s50, s2, s50")
    A("v_lshrrev_b32 v1, 6, v0")
    A("v_and_b32 v2, 63, v0")
    A("s_nop 0")
    A("v_readfirstlane_b32 s52, v1")
    A("v_lshlrev_b32 v1, 4, v2")
    A("s_and_b32 s53, s52, 3")
    A("s_lshr_b32 s54, s52, 2")
    A("s_lshl_b32 s55, s50, 2")
    A("s_add_u32 s55, s55, s53")
    A(f"s_mul_i32 s56, s55, {56*1024}")
    A(f"s_add_u32 s56, s56, {WGU_P}")
    NS = 6
    WB = 16
    for s in range(NS):
        A(f"s_add_u32 s57, s56, {(s//2)*4096}")
        for gu in range(2):
            r = WB + 8 * s + 4 * gu
            A(f"buffer_load_dwordx4 v[{r}:{r+3}], v1, s[28:31], s57 offen offset:{(s%2)*2048 + gu*1024}")
    gen_ln(32, 51, 52, 64)
    A(f"s_mul_i32 s58, s54, {2*56*512}")
    gen_xaddr(4, 58)
    ACC = 64
    for r in range(64):
        A(f"v_mov_b32 v{ACC+r}, 0")
    A("s_waitcnt lgkmcnt(0)")
    A("s_barrier")
    XB = 128
    def xread(s):
        a, b = s // 4, s % 4
        for t in range(2):
            r = XB + 8 * (s % 3) + 4 * t
            A(f"ds_read_b128 v[{r}:{r+3}], v{4+b} offset:{a*4096 + t*28672}")
    for s in range(2):
        xread(s)
    for s in range(28):
        if s + 2 < 28:
            xread(s + 2)
        nl = 2 * (min(28, s + 3) - (s + 1))
        nv = 2 * (min(28, s + NS) - (s + 1))
        A(f"s_waitcnt vmcnt({nv}) lgkmcnt({nl})")
        w = WB + 8 * (s % NS)
        for t in range(2):
            x = XB + 8 * (s % 3) + 4 * t
            for gu in range(2):
                a = ACC + 32 * t + 16 * gu
                A(f"v_mfma_f32_32x32x16_bf16 v[{a}:{a+15}], v[{w+4*gu}:{w+4*gu+3}], v[{x}:{x+3}], v[{a}:{a+15}]")
        if s + NS < 28:
            s2 = s + NS
            A(f"s_add_u32 s57, s56, {(s2//2)*4096}")
            for gu in range(2):
                A(f"buffer_load_dwordx4 v[{w+4*gu}:{w+4*gu+3}], v1, s[28:31], s57 offen offset:{(s2%2)*2048 + gu*1024}")
    nop(14)
    for t in range(2):
        G = ACC + 32 * t
        U = G + 16
        T = 160
        for i in range(8):
            A(f"v_cvt_pk_bf16_f32 v{T+i}, v{G+2*i}, v{G+2*i+1}")
            A(f"v_cvt_pk_bf16_f32 v{T+8+i}, v{U+2*i}, v{U+2*i+1}")
        for i in range(8):
            A(f"v_lshlrev_b32 v{G+2*i}, 16, v{T+i}")
            A(f"v_and_b32 v{G+2*i+1}, 0xffff0000, v{T+i}")
            A(f"v_lshlrev_b32 v{U+2*i}, 16, v{T+8+i}")
            A(f"v_and_b32 v{U+2*i+1}, 0xffff0000, v{T+8+i}")
        for r in range(16):
            A(f"v_mul_f32 v{G+r}, 0xbfb8aa3b, v{G+r}")
        for r in range(16):
            A(f"v_exp_f32 v{G+r}, v{G+r}")
        nop(1)
        for r in range(16):
            A(f"v_add_f32 v{G+r}, 1.0, v{G+r}")
        for r in range(16):
            A(f"v_rcp_f32 v{G+r}, v{G+r}")
        nop(1)
        for i in range(8):
            A(f"v_cvt_pk_bf16_f32 v{T+i}, v{G+2*i}, v{G+2*i+1}")
        for i in range(8):
            A(f"v_lshlrev_b32 v{G+2*i}, 16, v{T+i}")
            A(f"v_and_b32 v{G+2*i+1}, 0xffff0000, v{T+i}")
        for r in range(16):
            A(f"v_mul_f32 v{G+r}, v{G+r}, v{U+r}")
        O = 176 + 8 * t
        for i in range(8):
            A(f"v_cvt_pk_bf16_f32 v{O+i}, v{G+2*i}, v{G+2*i+1}")
        A("s_lshl_b32 s57, s51, 2")
        A("s_lshl_b32 s58, s54, 1")
        A("s_add_u32 s57, s57, s58")
        A(f"s_add_u32 s57, s57, {t}")
        A("s_mul_i32 s57, s57, 56")
        A("s_add_u32 s57, s57, s55")
        A("s_lshl_b32 s57, s57, 11")
        A(f"s_add_u32 s57, s57, {HBUF}")
        for ks in range(2):
            A(f"buffer_store_dwordx4 v[{O+4*ks}:{O+4*ks+3}], v1, s[28:31], s57 offen offset:{ks*1024}")
    L("K3_END")
    A("s_endpgm")

def gen_k4():
    for layer in range(2):
        kernel_begin(f"k4{'ab'[layer]}_kernel")
        A(f"s_mov_b32 s48, {layer}")
        A("s_branch K4_BODY")
        kernels.append((f"k4{'ab'[layer]}_kernel", 256, 102))
    out.append(".p2align 8")
    L("K4_BODY")
    A("s_cmp_ge_u32 s2, 224")
    A("s_cbranch_scc1 K4_END")
    load_kernargs()
    srd(28, 24, WS_SIZE)
    A(f"s_mul_i32 s46, s48, {2*XSZ}")
    A(f"s_add_u32 s46, s46, {XBUF}")
    A("s_add_u32 s44, s24, s46")
    A("s_addc_u32 s45, s25, 0")
    srd(32, 44, XSZ)
    A(f"s_add_u32 s44, s24, {XBUF + XSZ}")
    A("s_addc_u32 s45, s25, 0")
    A("s_cmp_eq_u32 s48, 0")
    A("s_cselect_b32 s44, s44, s20")
    A("s_cselect_b32 s45, s45, s21")
    srd(36, 44, XSZ)
    A("s_mov_b32 s46, 0x24924925")
    A("s_mul_hi_u32 s51, s2, s46")
    A("s_mul_i32 s50, s51, 7")
    A("s_sub_u32 s50, s2, s50")
    A("v_lshrrev_b32 v1, 6, v0")
    A("v_and_b32 v2, 63, v0")
    A("s_nop 0")
    A("v_readfirstlane_b32 s52, v1")
    A("v_lshlrev_b32 v1, 4, v2")
    A("s_mul_i32 s53, s52, 7")
    for t in range(2):
        A(f"s_lshl_b32 s57, s51, 1")
        A(f"s_add_u32 s57, s57, {t}")
        A("s_mul_i32 s57, s57, 56")
        A("s_add_u32 s57, s57, s53")
        A("s_lshl_b32 s57, s57, 11")
        A(f"s_add_u32 s{62+t}, s57, {HBUF}")
        A(f"s_lshl_b32 s57, s50, 1")
        A(f"s_add_u32 s57, s57, {t}")
        A("s_mul_i32 s57, s57, 56")
        A("s_add_u32 s57, s57, s53")
        A("s_lshl_b32 s57, s57, 11")
        A(f"s_add_u32 s{64+t}, s57, {WD_P}")
    ACC = 64
    NS = 6
    SB = 128
    def ld(s):
        r = SB + 16 * (s % NS)
        for i in range(4):
            A(f"s_add_u32 s57, s{62+i}, {(s//4)*4096}")
            A(f"buffer_load_dwordx4 v[{r+4*i}:{r+4*i+3}], v1, s[28:31], s57 offen offset:{(s%4)*1024}")
    for s in range(NS):
        ld(s)
    for r in range(64):
        A(f"v_mov_b32 v{ACC+r}, 0")
    for s in range(14):
        nv = 4 * (min(14, s + NS) - (s + 1))
        A(f"s_waitcnt vmcnt({nv})")
        r = SB + 16 * (s % NS)
        for t in range(2):
            for c in range(2):
                a = ACC + 16 * (2 * t + c)
                A(f"v_mfma_f32_32x32x16_bf16 v[{a}:{a+15}], v[{r+8+4*c}:{r+8+4*c+3}], v[{r+4*t}:{r+4*t+3}], v[{a}:{a+15}]")
        if s + NS < 14:
            ld(s + NS)
    nop(4)
    gen_red_epilogue(ACC, 51, 50, 52, 32, 36)
    L("K4_END")
    A("s_endpgm")

def main():
    hdr = []
    out.append('.amdgcn_target "amdgcn-amd-amdhsa--gfx950"')
    out.append(".text")
    nwg0 = gen_k0()
    gen_k1(); gen_k2(); gen_k3(); gen_k4()
    out.append('.section .rodata,"a"')
    for (label, vg, sg) in kernels:
        out.append(".p2align 6")
        out.append(f".amdhsa_kernel {label}")
        out.append(f"  .amdhsa_next_free_vgpr {vg}")
        out.append(f"  .amdhsa_next_free_sgpr {sg}")
        out.append(f"  .amdhsa_accum_offset {vg}")
        out.append("  .amdhsa_group_segment_fixed_size 0")
        out.append("  .amdhsa_kernarg_size 88")
        out.append("  .amdhsa_user_sgpr_count 2")
        out.append("  .amdhsa_user_sgpr_kernarg_segment_ptr 1")
        out.append("  .amdhsa_system_sgpr_workgroup_id_x 1")
        out.append(".end_amdhsa_kernel")
    seq = [("k0_kernel", nwg0, 256, 0)]
    for l in "ab":
        seq += [(f"k1{l}_kernel", 256, 512, 147456), (f"k2{l}_kernel", 224, 512, 131072),
                (f"k3{l}_kernel", 224, 512, 114688), (f"k4{l}_kernel", 224, 512, 131072)]
    nlaunch = int(sys.argv[2]) if len(sys.argv) > 2 else len(seq)
    for (k, g, b, l) in seq[:nlaunch]:
        hdr.append(f"; @launch kernel={k} grid=({g},1,1) block=({b},1,1) lds={l}")
    open(sys.argv[1], "w").write("\n".join(hdr + out) + "\n")
    print("ws layout:", dict(WQKV_P=WQKV_P, WPHI_P=WPHI_P, WO_P=WO_P, WGU_P=WGU_P, WD_P=WD_P, KVSUM=KVSUM, PHIQ=PHIQ, XBUF=XBUF, HBUF=HBUF, END=WS_END))
main()
```
